```python
import torch

def _softmax(x, axis=-1):
    return torch.softmax(x, dim=axis)

def _gelu(x):
    return torch.nn.functional.gelu(x, approximate='tanh')

def _silu(x):
    return torch.nn.functional.silu(x)

def _sigmoid(x):
    return torch.sigmoid(x)

def _layernorm(x, axis=-1, eps=1e-05):
    m = x.mean(dim=axis, keepdim=True)
    v = x.var(dim=axis, keepdim=True, unbiased=False)
    return (x - m) / torch.sqrt(v + eps)

def _scatter_add(tgt, idx, src, axis=0):
    return tgt.clone().index_add_(axis, idx, src)

def _segment_sum(src, seg, n):
    out = torch.zeros((n,) + src.shape[1:], dtype=src.dtype)
    return out.index_add_(0, seg, src)

def _pad(x, pw):
    flat = tuple((v for pair in reversed(pw) for v in pair))
    return torch.nn.functional.pad(x, flat)
kernel_name = 'recurrent_scan__ssm_conv_s4d__mixer_gmlp__prompt'

def setup_inputs():

    _w = lambda a: (lambda t: t.to(torch.bfloat16) if t.is_floating_point() else t)(torch.as_tensor(a))

    def _A_setup():
        Bsz, L, D, N = (1, 2048, 512, 128)
        return {'u': _w((lambda *s: torch.randn(*s, dtype=torch.bfloat16) * 0.05)(Bsz, L, D)), 'log_A_real': _w((lambda *s: torch.randn(*s, dtype=torch.bfloat16) * 6.4)(D, N) * 0.5), 'A_imag': _w((lambda *s: torch.randn(*s, dtype=torch.bfloat16) * 0.05)(D, N) * 3.14), 'C_real': _w((lambda *s: torch.randn(*s, dtype=torch.bfloat16) * 0.05)(D, N) / N ** 0.5), 'C_imag': _w((lambda *s: torch.randn(*s, dtype=torch.bfloat16) * 0.05)(D, N) / N ** 0.5), 'log_dt': _w((lambda *s: torch.randn(*s, dtype=torch.bfloat16) * 0.05)(D) * 0.5 - 4.0), 'D_skip': _w((lambda *s: torch.randn(*s, dtype=torch.bfloat16) * 0.05)(D))}
    _A_in = _A_setup()

    def _B_setup():
        B, S, D, F = (1, 2048, 512, 1792)
        Fh = F // 2
        return {'x': _w((lambda *s: torch.randn(*s, dtype=torch.bfloat16) * 0.05)(B, S, D)), 'w_in': _w((lambda *s: torch.randn(*s, dtype=torch.bfloat16) * 0.4)(D, 2 * Fh)), 'w_sp': _w(0.01 * (lambda *s: torch.randn(*s, dtype=torch.bfloat16) * 0.4)(S, S)), 'b_sp': _w(1.0 + 0.01 * (lambda *s: torch.randn(*s, dtype=torch.bfloat16) * 0.05)(S)), 'w_out': _w((lambda *s: torch.randn(*s, dtype=torch.bfloat16) * 0.05)(Fh, D))}
    _B_in = _B_setup()
    return {'A_u': _A_in['u'], 'A_log_A_real': _A_in['log_A_real'], 'A_A_imag': _A_in['A_imag'], 'A_C_real': _A_in['C_real'], 'A_C_imag': _A_in['C_imag'], 'A_log_dt': _A_in['log_dt'], 'A_D_skip': _A_in['D_skip'], 'B_x': _B_in['x'], 'B_w_in': _B_in['w_in'], 'B_w_sp': _B_in['w_sp'], 'B_b_sp': _B_in['b_sp'], 'B_w_out': _B_in['w_out']}

def reference(A_u, A_log_A_real, A_A_imag, A_C_real, A_C_imag, A_log_dt, A_D_skip, B_x, B_w_in, B_w_sp, B_b_sp, B_w_out):

    def _A_ref(u, log_A_real, A_imag, C_real, C_imag, log_dt, D_skip):
        L = u.shape[1]
        dt = torch.exp(log_dt)
        A = -torch.exp(log_A_real) + 1j * A_imag
        C = (C_real + 1j * C_imag) * dt[:, None]
        pos = (lambda x, dt: x.to(dt))(torch.arange(L), log_dt.dtype)
        P = torch.exp((A * dt[:, None])[:, :, None] * pos[None, None, :])
        K = 2.0 * torch.einsum('dn,dnl->dl', C, P).real
        L2 = 2 * L
        u_t = (lambda x, *d: x.permute(*d))(u, 0, 2, 1)
        Kf = (lambda x, *a, **k: torch.fft.rfft(x.float(), *a, **k))(K, L2)
        Uf = (lambda x, *a, **k: torch.fft.rfft(x.float(), *a, **k))(u_t, L2)
        y = (lambda x, *a, **k: torch.fft.irfft(x, *a, **k).to(torch.bfloat16))(Uf * Kf[None, :, :], L2)[:, :, :L]
        y = (lambda x, *d: x.permute(*d))(y, 0, 2, 1)
        return y + u * D_skip[None, None, :]

    def _B_ref(x, w_in, w_sp, b_sp, w_out):
        B, S, D = x.shape
        F = w_in.shape[-1]
        Fh = F // 2
        z = _gelu(torch.einsum('bsd,df->bsf', x, w_in))
        z1 = z[..., :Fh].clone()
        z2 = _layernorm(z[..., Fh:], axis=-1)
        g = torch.einsum('ts,bsf->btf', w_sp, z2) + b_sp[None, :, None]
        return torch.einsum('bsf,fd->bsd', z1 * g, w_out)
    x = A_u
    xn = _layernorm(x, axis=-1)
    s = _A_ref(xn, A_log_A_real, A_A_imag, A_C_real, A_C_imag, A_log_dt, A_D_skip)
    g = _silu(_B_ref(xn, B_w_in, B_w_sp, B_b_sp, B_w_out))
    return x + s * g
```

```python
import re

def v(i, n=1): return 'v%d' % i if n == 1 else 'v[%d:%d]' % (i, i + n - 1)
def a(i, n=1): return 'a%d' % i if n == 1 else 'a[%d:%d]' % (i, i + n - 1)
def s(i, n=1): return 's%d' % i if n == 1 else 's[%d:%d]' % (i, i + n - 1)

_REG = re.compile(r'^(-|abs\(|-abs\(|\|)?([vas])(?:(\d+)|\[(\d+):(\d+)\])\)?\|?$')
TRANS = ('v_exp_f32', 'v_log_f32', 'v_rcp_f32', 'v_rsq_f32', 'v_sqrt_f32', 'v_sin_f32', 'v_cos_f32')

def regs_of(op):
    op = op.strip()
    if op == 'vcc': return {('s', 'vcc')}
    if op == 'exec': return {('s', 'exec')}
    if op == 'm0': return {('s', 'm0')}
    m = _REG.match(op)
    if not m: return set()
    k = m.group(2)
    if m.group(3) is not None: return {(k, int(m.group(3)))}
    return {(k, i) for i in range(int(m.group(4)), int(m.group(5)) + 1)}

class Ins:
    def __init__(self, text, tag=None):
        self.text = text; self.tag = tag
        t = text.split(';')[0].strip()
        self.is_label = t.endswith(':')
        self.is_dir = t.startswith('.') and not self.is_label
        self.kind = 'other'; self.dst = set(); self.src = set(); self.srcC = set(); self.passes = 0
        self.wait = None
        if self.is_label or self.is_dir or not t: return
        parts = t.split(None, 1)
        op = self.op = parts[0]
        rest = parts[1] if len(parts) > 1 else ''
        ops = []; depth = 0; cur = ''
        for ch in rest:
            if ch in '[(': depth += 1
            if ch in '])': depth -= 1
            if ch == ',' and depth == 0: ops.append(cur.strip()); cur = ''
            else: cur += ch
        if cur.strip(): ops.append(cur.strip())
        mods = ''
        if ops:
            l = ops[-1].split(None, 1)
            ops[-1] = l[0]; mods = l[1] if len(l) > 1 else ''
        self.ops = ops; self.mods = mods
        R = [regs_of(o) for o in ops]
        allr = set().union(*R) if R else set()
        base = re.sub(r'_(e32|e64|dpp|sdwa)$', '', op)
        self.base = base
        if op.startswith('v_mfma'):
            self.kind = 'mfma'; self.passes = 8 if '32x32' in op else 4
            self.dst = R[0]; self.src = R[1] | R[2] | R[3]; self.srcC = R[3]; self.srcAB = R[1] | R[2]
        elif op.startswith('v_'):
            self.kind = 'valu'
            self.trans = base in TRANS
            self.dot = base.startswith('v_dot')
            self.dpp = op.endswith('_dpp')
            self.perml = base.startswith('v_permlane')
            self.rdlane = base in ('v_readfirstlane_b32', 'v_readlane_b32')
            self.dst = set(R[0]); self.src = set().union(*R[1:]) if len(R) > 1 else set()
            if self.perml or base == 'v_swap_b32': self.dst = R[0] | R[1]; self.src = R[0] | R[1]
            if base in ('v_fmac_f32', 'v_dot2c_f32_bf16', 'v_writelane_b32') or (self.dpp and 'bound_ctrl' not in mods): self.src |= R[0]
            if base in ('v_add_co_u32', 'v_addc_co_u32', 'v_sub_co_u32'): self.dst |= R[1]; self.src = set().union(*R[2:])
            if base.startswith('v_cmpx'): self.dst |= {('s', 'exec')}
        elif op.startswith('buffer_') or op.startswith('global_'):
            if op in ('buffer_inv', 'buffer_wbl2'):
                self.kind = 'vmem'
            elif 'load' in op and (' lds' in ' ' + mods or 'load_lds' in op):
                self.kind = 'vmem'; self.src = allr | {('s', 'm0')}; self.dma = True
            elif 'load' in op:
                self.kind = 'vmem'; self.dst = R[0]; self.src = set().union(*R[1:])
                if 'd16' in op: self.src |= R[0]
            else:
                self.kind = 'vmem'; self.src = allr; self.store = True
                self.data = R[0] if op.startswith('buffer_') else R[1]
                self.wide = op.endswith('x4') or op.endswith('x3')
                if 'atomic' in op and 'sc0' in mods: self.dst = R[0]
        elif op.startswith('ds_'):
            self.kind = 'ds'
            if 'read' in op or 'permute' in op or 'swizzle' in op or '_rtn' in op:
                self.dst = R[0]; self.src = set().union(*R[1:])
                if 'd16' in op: self.src |= R[0]
            else: self.src = allr
        elif op.startswith('s_load') or op in ('s_memtime', 's_memrealtime') or op.startswith('s_buffer_load'):
            self.kind = 'smem'; self.dst = R[0]; self.src = set().union(*R[1:]) if len(R) > 1 else set()
        elif op == 's_waitcnt': self.kind = 'wait'
        elif op == 's_nop': self.kind = 'nop'; self.n = int(ops[0]) + 1
        elif op.startswith('s_cbranch') or op in ('s_branch', 's_endpgm', 's_setpc_b64'): self.kind = 'branch'
        elif op.startswith('s_'):
            self.kind = 'salu'
            if op.startswith('s_cmp') or op in ('s_barrier', 's_setprio', 's_sleep'): self.src = allr
            else:
                self.dst = set(R[0]) if R else set(); self.src = set().union(*R[1:]) if len(R) > 1 else set()
                if 'saveexec' in op: self.dst |= {('s', 'exec')}; self.src |= {('s', 'exec')}

class Wait:
    def __init__(self, vm=None, lg=None): self.vm = vm; self.lg = lg

class Prog:
    def __init__(self): self.items = []
    def __call__(self, text, tag=None):
        for t in text.split('\n'):
            if t.strip(): self.items.append(Ins(t.strip(), tag))
        return self
    def wait(self, vm=None, lg=None): self.items.append(Wait(vm, lg))
    def extend(self, other): self.items.extend(other.items if isinstance(other, Prog) else other)
    def label(self, n): self.items.append(Ins(n + ':'))

def weave(main, fill, slots=None):
    m = main.items if isinstance(main, Prog) else main
    f = fill.items if isinstance(fill, Prog) else fill
    w = slots or [1] * len(m)
    tot = sum(w); out = []; acc = 0; k = 0
    for it, wi in zip(m, w):
        out.append(it); acc += wi
        upto = (len(f) * acc + tot - 1) // tot if tot else len(f)
        while k < min(upto, len(f)): out.append(f[k]); k += 1
    out.extend(f[k:])
    p = Prog(); p.items = out; return p

def need_states(p, c):
    n = 0
    isv = lambda r: r[0] in 'va'
    if p.kind == 'valu':
        pv = {r for r in p.dst if isv(r)}; ps = {r for r in p.dst if not isv(r)}
        if c.kind == 'mfma':
            if pv & c.src: n = max(n, 3 if p.dot else 2)
            if ('s', 'exec') in ps: n = max(n, 4)
        if c.kind == 'valu':
            if p.trans and not c.trans and (pv & c.src): n = max(n, 1)
            if p.trans and c.trans and (pv & c.src): n = max(n, 1)
            if (c.dpp or c.perml) and (pv & c.src): n = max(n, 2)
            if c.rdlane and (pv & c.src): n = max(n, 1)
            if ps & c.src: n = max(n, 4 if c.base in ('v_readlane_b32', 'v_writelane_b32') else 2)
            if ('s', 'exec') in ps and (c.dpp or c.perml or c.rdlane): n = max(n, 5)
            if p.dot and (pv & (c.src | c.dst)):
                same = c.base == p.base and len(c.ops) >= 3 and not (pv & (regs_of(c.ops[1]) | regs_of(c.ops[2])))
                if not same: n = max(n, 3)
            if 'op_sel' in p.mods and not p.base.startswith('v_pk') and (pv & (c.src | c.dst)): n = max(n, 1)
            if p.op.endswith('_sdwa') and (pv & (c.src | c.dst)): n = max(n, 1)
        if c.kind in ('vmem', 'ds'):
            if p.dot and (pv & c.src): n = max(n, 3)
            if p.trans and (pv & c.src): n = max(n, 1)
        if c.kind == 'vmem' and (ps & c.src): n = max(n, 5)
        if c.kind in ('salu', 'smem', 'branch') and (ps & c.src or (c.kind == 'branch' and ('s', 'vcc') in ps and 'vcc' in c.op)): n = max(n, 2)
    elif p.kind == 'mfma':
        big = p.passes == 8
        if c.kind == 'mfma':
            if p.dst & c.srcAB: n = max(n, 12 if big else 8)
            if p.dst & c.srcC and not (p.dst == c.srcC and p.passes == c.passes): n = max(n, 10 if big else 6)
            if (p.dst & c.dst) and not (p.dst & c.srcC): n = max(n, 12 if big else 8)
        elif c.kind in ('valu', 'vmem', 'ds'):
            if p.dst & (c.src | c.dst): n = max(n, 12 if big else 8)
            if c.kind == 'valu' and (p.srcC & c.dst): n = max(n, 7 if big else 3)
    elif p.kind == 'salu':
        if ('s', 'm0') in p.dst and c.kind == 'vmem' and ('s', 'm0') in c.src: n = max(n, 1)
    elif p.kind == 'vmem' and getattr(p, 'store', False) and p.wide:
        if c.kind in ('valu', 'mfma') and (p.data & c.dst): n = max(n, 2)
        elif p.data & c.dst: n = max(n, 1)
    return n

def finalize(prog, stats=None):
    out = []
    vm = []; lg = []
    def emit_wait(nv, nl):
        nonlocal vm, lg
        parts = []
        if nv is not None:
            nv = min(nv, 63)
            if nv < len(vm): parts.append('vmcnt(%d)' % nv); vm = vm[len(vm) - nv:] if nv else []
        if nl is not None:
            if any(x.kind == 'smem' for x in lg): nl = 0
            nl = min(nl, 15)
            if nl < len(lg): parts.append('lgkmcnt(%d)' % nl); lg = lg[len(lg) - nl:] if nl else []
        if parts: out.append(Ins('s_waitcnt ' + ' '.join(parts)))
    def after(q, pred):
        idx = [i for i, x in enumerate(q) if pred(x)]
        return None if not idx else len(q) - 1 - idx[-1]
    seen_tags = set()
    for it in prog.items:
        if isinstance(it, Wait):
            for t in (it.vm, it.lg):
                assert t is None or t == 'all' or t in seen_tags, 'wait on unknown tag %s' % t
            nv = None if it.vm is None else (0 if it.vm == 'all' else after(vm, lambda x: x.tag == it.vm))
            nl = None if it.lg is None else (0 if it.lg == 'all' else after(lg, lambda x: x.tag == it.lg))
            emit_wait(nv, nl); continue
        if it.kind == 'wait':
            m = re.search(r'vmcnt\((\d+)\)', it.text)
            if m: k = int(m.group(1)); vm = vm[len(vm) - k:] if 0 < k < len(vm) else ([] if k == 0 else vm)
            m = re.search(r'lgkmcnt\((\d+)\)', it.text)
            if m: k = int(m.group(1)); lg = lg[len(lg) - k:] if 0 < k < len(lg) else ([] if k == 0 else lg)
            out.append(it); continue
        if it.is_dir and it.text.startswith('.reset'):
            vm = []; lg = []; out.append(Ins('s_nop 0')); continue
        touch = it.src | it.dst
        if touch:
            emit_wait(after(vm, lambda x: x.dst & touch), after(lg, lambda x: x.dst & touch))
        need = 0; dist = 0
        for p in reversed(out):
            if p.is_label or p.is_dir: continue
            need = max(need, need_states(p, it) - dist)
            dist += p.n if p.kind == 'nop' else 1
            if dist >= 20: break
        while need > 0:
            k = min(need, 16); out.append(Ins('s_nop %d' % (k - 1))); need -= k
            if stats is not None: stats['nops'] = stats.get('nops', 0) + 1
        out.append(it)
        if it.tag: seen_tags.add(it.tag)
        if it.kind == 'vmem':
            vm.append(it)
            assert len(vm) <= 63, 'more than 63 vmem ops outstanding'
        if it.kind in ('ds', 'smem'): lg.append(it)
    return [(x.text if x.is_label or x.is_dir else '    ' + x.text) for x in out]

def kernel_text(name, lines):
    return '.globl %s\n.p2align 8\n.type %s,@function\n%s:\n' % (name, name, name) + '\n'.join(lines) + '\n'

def descriptor(name, vgprs, accum, sgprs=100):
    return '''.p2align 6
.amdhsa_kernel %s
  .amdhsa_next_free_vgpr %d
  .amdhsa_next_free_sgpr %d
  .amdhsa_accum_offset %d
  .amdhsa_group_segment_fixed_size 0
  .amdhsa_kernarg_size 120
  .amdhsa_user_sgpr_count 2
  .amdhsa_user_sgpr_kernarg_segment_ptr 1
  .amdhsa_system_sgpr_workgroup_id_x 1
.end_amdhsa_kernel
''' % (name, vgprs, sgprs, accum)
```

```python
import sys, os
sys.path.insert(0, os.path.dirname(os.path.abspath(__file__)))
from asmlib import *
HEAD = open('recurrent_scan__ssm_conv_s4d__mixer_gmlp__prompt.s.ref').read().split('; Override launch')[0]
def build(kernels, path, order=None, single=False):
    t = HEAD
    for k in (order or kernels): t += '; @launch kernel=%s grid=(%d,1,1) block=(%d,1,1) lds=%d\n' % (k['name'], k['grid'], k['block'], k['lds'])
    if single: t = t.replace('kernel=%s ' % kernels[0]['name'], '')
    t += '.amdgcn_target "amdgcn-amd-amdhsa--gfx950"\n.text\n'
    for k in kernels: t += kernel_text(k['name'], k['lines'])
    t += 'code_end:\n    s_endpgm\n.section .rodata,"a"\n'
    for k in kernels: t += descriptor(k['name'], k['vgprs'], k['accum'])
    open(path, 'w').write(t)
```

```python
from build import *; from k1 import *; from k2 import *; from k3 import *
import sys
OUT = 'recurrent_scan__ssm_conv_s4d__mixer_gmlp__prompt.s'
if __name__ == '__main__':
    build([gen_k1(), gen_k2(), gen_k3()], OUT)
```

```python
from build import *; from k1 import *; from k2 import *; from k3 import *
k1, k2, k3 = gen_k1(), gen_k2(), gen_k3()
e = dict(name='e_kernel', lines=['    s_endpgm'], vgprs=8, accum=8, grid=256, block=64, lds=0)
build([k1, k2, k3], 'x_base.s')
build([k1, k2, k3, e], 'x_e_end.s')
build([k1, k2, k3, e], 'x_e_start.s', order=[e, k1, k2, k3])
build([k1, k2, k3, e], 'x_e4.s', order=[k1, k2, k3, e, e, e, e])
build([k1, k2, k3], 'x_twice.s', order=[k1, k2, k3, k1, k2, k3])
build([k1, k2, k3], 'x_k2twice.s', order=[k1, k2, k2, k3])
```

```python
from asmlib import *
Z2F = 0x0000000
Z1F = 0x0400000
HF  = 0x0800000
XNT = 0x0C00000
ST  = 0x0E00000
STATS = 0x1000000
TIMES = 0x1040000
WS_SIZE = 0x1100000
KA = dict(x=0, logA=8, Aim=16, Cre=24, Cim=32, logdt=40, Dskip=48, w_in=64, w_sp=72, b_sp=80, w_out=88, out=96, dbg=104, ws=112)
SZ = dict(x=2097152, logA=131072, Aim=131072, Cre=131072, Cim=131072, logdt=1024, Dskip=1024, w_in=1835008, w_sp=8388608,
          b_sp=4096, w_out=917504, out=2097152, dbg=256, ws=WS_SIZE)
LOG2E = 1.4426950408889634

import struct
def fhex(x): return '0x%08x' % struct.unpack('<I', struct.pack('<f', x))[0]

def load_srds(p, names, first):
    r = {}
    for i, n in enumerate(names):
        b = first + 4 * i; r[n] = b
        p('s_load_dwordx2 %s, s[0:1], %d' % (s(b, 2), KA[n]))
    for n, b in r.items():
        p('s_mov_b32 %s, %d' % (s(b + 2), SZ[n])); p('s_mov_b32 %s, 0x20000' % s(b + 3))
    return r

class Diag:
    on = False
    cyc = False
ST0 = 66
class Stamper:
    def __init__(self, kidx): self.n = 0; self.kidx = kidx; self.names = []
    def __call__(self, p, name):
        if not Diag.on: return
        assert self.n < 15
        if self.n == 0: p('s_memtime s[96:97]')
        p('%s %s' % ('s_memtime' if Diag.cyc else 's_memrealtime', s(ST0 + 2 * self.n, 2))); self.n += 1; self.names.append(name)
    def flush(self, p, srd_ws, sW, vt=250):
        if not Diag.on: return
        p.wait(vm='all'); self(p, 'end'); p('s_memtime s[98:99]'); p.wait(lg='all'); p('s_sub_u32 s98, s98, s96')
        p('v_mov_b32 %s, 0' % v(vt))
        for i in range(self.n): p('v_writelane_b32 %s, %s, %d' % (v(vt), s(ST0 + 2 * i), i))
        p('v_writelane_b32 %s, s98, 15' % v(vt))
        p('s_lshl_b32 s3, s2, 2'); p('s_add_u32 s3, s3, %s' % s(sW)); p('s_lshl_b32 s3, s3, 6'); p('s_add_u32 s3, s3, %d' % (TIMES + self.kidx * 512 * 4 * 64))
        p('v_lshlrev_b32 %s, 2, v0' % v(vt + 1)); p('s_mov_b64 exec, 0xffff')
        p('buffer_store_dword %s, %s, %s, s3 offen' % (v(vt), v(vt + 1), s(srd_ws, 4)))

def code_prefetch(p, uniq, first, last, sW, vt, st, nwaves_log2=2):
    p('s_getpc_b64 %s' % s(st, 2)); p.label(uniq)
    p('s_sub_u32 %s, %s, %s-%s' % (s(st), s(st), uniq, first)); p('s_subb_u32 %s, %s, 0' % (s(st + 1), s(st + 1)))
    p('s_lshr_b32 %s, s2, 3' % s(st + 2)); p('s_lshl_b32 %s, %s, %d' % (s(st + 2), s(st + 2), nwaves_log2)); p('s_add_u32 %s, %s, %s' % (s(st + 2), s(st + 2), s(sW)))
    p('s_and_b32 %s, %s, 7' % (s(st + 2), s(st + 2))); p('s_lshl_b32 %s, %s, 13' % (s(st + 2), s(st + 2)))
    p('v_lshlrev_b32 %s, 7, v0' % v(vt)); p('v_add_u32 %s, %s, %s' % (v(vt), s(st + 2), v(vt)))
    p('v_min_u32 %s, %s-%s-4, %s' % (v(vt), last, first, v(vt)))
    p('v_mov_b32 %s, %s' % (v(vt + 1), s(st + 1)))
    p('v_add_co_u32 %s, vcc, %s, %s' % (v(vt), s(st), v(vt))); p('v_addc_co_u32 %s, vcc, 0, %s, vcc' % (v(vt + 1), v(vt + 1)))
    p('global_load_dword %s, %s, off' % (v(vt + 2), v(vt, 2)))
```

```python
from build import *; from k1 import *; from k2 import *; from k3 import *
import common, json, sys
OUT = 'recurrent_scan__ssm_conv_s4d__mixer_gmlp__prompt.s'
def make(path, diag=False, k1kw={}, k2kw={}, k3kw={}):
    common.Diag.on = bool(diag); common.Diag.cyc = diag == 'cyc'
    ks = [gen_k1(**k1kw), gen_k2(**k2kw), gen_k3(**k3kw)]
    build(ks, path)
    if diag: json.dump([k['stamps'] for k in ks], open(path.replace('.s', '.json'), 'w'))
if __name__ == '__main__':
    make(OUT); make('diag.s', True); make('diagcyc.s', 'cyc')
```

```python
from mk import *
make('y_none.s', k1kw=dict(cpf=False, wpf=False))
make('y_cpf.s', k1kw=dict(cpf=True, wpf=False))
make('y_cpf_wpf.s', k1kw=dict(cpf=True, wpf=True))
make('y_sc1.s', k1kw=dict(stf=' sc1'), k2kw=dict(stf=' sc1'))
make('y_nt.s', k1kw=dict(stf=' nt'), k2kw=dict(stf=' nt'))
make('y_prio.s', k2kw=dict(prio=True))
```

```python
import re

def v(i, n=1): return 'v%d' % i if n == 1 else 'v[%d:%d]' % (i, i + n - 1)
def a(i, n=1): return 'a%d' % i if n == 1 else 'a[%d:%d]' % (i, i + n - 1)
def s(i, n=1): return 's%d' % i if n == 1 else 's[%d:%d]' % (i, i + n - 1)

_REG = re.compile(r'^(-|abs\(|-abs\(|\|)?([vas])(?:(\d+)|\[(\d+):(\d+)\])\)?\|?$')
TRANS = ('v_exp_f32', 'v_log_f32', 'v_rcp_f32', 'v_rsq_f32', 'v_sqrt_f32', 'v_sin_f32', 'v_cos_f32')

def regs_of(op):
    op = op.strip()
    if op == 'vcc': return {('s', 'vcc')}
    if op == 'exec': return {('s', 'exec')}
    if op == 'm0': return {('s', 'm0')}
    m = _REG.match(op)
    if not m: return set()
    k = m.group(2)
    if m.group(3) is not None: return {(k, int(m.group(3)))}
    return {(k, i) for i in range(int(m.group(4)), int(m.group(5)) + 1)}

class Ins:
    def __init__(self, text, tag=None):
        self.text = text; self.tag = tag
        t = text.split(';')[0].strip()
        self.is_label = t.endswith(':')
        self.is_dir = t.startswith('.') and not self.is_label
        self.kind = 'other'; self.dst = set(); self.src = set(); self.srcC = set(); self.passes = 0
        self.wait = None
        if self.is_label or self.is_dir or not t: return
        parts = t.split(None, 1)
        op = self.op = parts[0]
        rest = parts[1] if len(parts) > 1 else ''
        ops = []; depth = 0; cur = ''
        for ch in rest:
            if ch in '[(': depth += 1
            if ch in '])': depth -= 1
            if ch == ',' and depth == 0: ops.append(cur.strip()); cur = ''
            else: cur += ch
        if cur.strip(): ops.append(cur.strip())
        mods = ''
        if ops:
            l = ops[-1].split(None, 1)
            ops[-1] = l[0]; mods = l[1] if len(l) > 1 else ''
        self.ops = ops; self.mods = mods
        R = [regs_of(o) for o in ops]
        allr = set().union(*R) if R else set()
        base = re.sub(r'_(e32|e64|dpp|sdwa)$', '', op)
        self.base = base
        if op.startswith('v_mfma'):
            self.kind = 'mfma'; self.passes = 8 if '32x32' in op else 4
            self.dst = R[0]; self.src = R[1] | R[2] | R[3]; self.srcC = R[3]; self.srcAB = R[1] | R[2]
        elif op.startswith('v_'):
            self.kind = 'valu'
            self.trans = base in TRANS
            self.dot = base.startswith('v_dot')
            self.dpp = op.endswith('_dpp')
            self.perml = base.startswith('v_permlane')
            self.rdlane = base in ('v_readfirstlane_b32', 'v_readlane_b32')
            self.dst = set(R[0]); self.src = set().union(*R[1:]) if len(R) > 1 else set()
            if self.perml or base == 'v_swap_b32': self.dst = R[0] | R[1]; self.src = R[0] | R[1]
            if base in ('v_fmac_f32', 'v_dot2c_f32_bf16', 'v_writelane_b32') or (self.dpp and 'bound_ctrl' not in mods): self.src |= R[0]
            if base in ('v_add_co_u32', 'v_addc_co_u32', 'v_sub_co_u32'): self.dst |= R[1]; self.src = set().union(*R[2:])
            if base.startswith('v_cmpx'): self.dst |= {('s', 'exec')}
        elif op.startswith('buffer_') or op.startswith('global_'):
            if op in ('buffer_inv', 'buffer_wbl2'):
                self.kind = 'vmem'
            elif 'load' in op and (' lds' in ' ' + mods or 'load_lds' in op):
                self.kind = 'vmem'; self.src = allr | {('s', 'm0')}; self.dma = True
            elif 'load' in op:
                self.kind = 'vmem'; self.dst = R[0]; self.src = set().union(*R[1:])
                if 'd16' in op: self.src |= R[0]
            else:
                self.kind = 'vmem'; self.src = allr; self.store = True
                self.data = R[0] if op.startswith('buffer_') else R[1]
                self.wide = op.endswith('x4') or op.endswith('x3')
                if 'atomic' in op and 'sc0' in mods: self.dst = R[0]
        elif op.startswith('ds_'):
            self.kind = 'ds'
            if 'read' in op or 'permute' in op or 'swizzle' in op or '_rtn' in op:
                self.dst = R[0]; self.src = set().union(*R[1:])
                if 'd16' in op: self.src |= R[0]
            else: self.src = allr
        elif op.startswith('s_load') or op in ('s_memtime', 's_memrealtime') or op.startswith('s_buffer_load'):
            self.kind = 'smem'; self.dst = R[0]; self.src = set().union(*R[1:]) if len(R) > 1 else set()
        elif op == 's_waitcnt': self.kind = 'wait'
        elif op == 's_nop': self.kind = 'nop'; self.n = int(ops[0]) + 1
        elif op.startswith('s_cbranch') or op in ('s_branch', 's_endpgm', 's_setpc_b64'): self.kind = 'branch'
        elif op.startswith('s_'):
            self.kind = 'salu'
            if op.startswith('s_cmp') or op in ('s_barrier', 's_setprio', 's_sleep'): self.src = allr
            else:
                self.dst = set(R[0]) if R else set(); self.src = set().union(*R[1:]) if len(R) > 1 else set()
                if 'saveexec' in op: self.dst |= {('s', 'exec')}; self.src |= {('s', 'exec')}

class Wait:
    def __init__(self, vm=None, lg=None): self.vm = vm; self.lg = lg

class Prog:
    def __init__(self): self.items = []
    def __call__(self, text, tag=None):
        for t in text.split('\n'):
            if t.strip(): self.items.append(Ins(t.strip(), tag))
        return self
    def wait(self, vm=None, lg=None): self.items.append(Wait(vm, lg))
    def extend(self, other): self.items.extend(other.items if isinstance(other, Prog) else other)
    def label(self, n): self.items.append(Ins(n + ':'))

def weave(main, fill, slots=None):
    m = main.items if isinstance(main, Prog) else main
    f = fill.items if isinstance(fill, Prog) else fill
    w = slots or [1] * len(m)
    tot = sum(w); out = []; acc = 0; k = 0
    for it, wi in zip(m, w):
        out.append(it); acc += wi
        upto = (len(f) * acc + tot - 1) // tot if tot else len(f)
        while k < min(upto, len(f)): out.append(f[k]); k += 1
    out.extend(f[k:])
    p = Prog(); p.items = out; return p

def need_states(p, c):
    n = 0
    isv = lambda r: r[0] in 'va'
    if p.kind == 'valu':
        pv = {r for r in p.dst if isv(r)}; ps = {r for r in p.dst if not isv(r)}
        if c.kind == 'mfma':
            if pv & c.src: n = max(n, 3 if p.dot else 2)
            if ('s', 'exec') in ps: n = max(n, 4)
        if c.kind == 'valu':
            if p.trans and not c.trans and (pv & c.src): n = max(n, 1)
            if p.trans and c.trans and (pv & c.src): n = max(n, 1)
            if (c.dpp or c.perml) and (pv & c.src): n = max(n, 2)
            if c.rdlane and (pv & c.src): n = max(n, 1)
            if ps & c.src: n = max(n, 4 if c.base in ('v_readlane_b32', 'v_writelane_b32') else 2)
            if ('s', 'exec') in ps and (c.dpp or c.perml or c.rdlane): n = max(n, 5)
            if p.dot and (pv & (c.src | c.dst)):
                same = c.base == p.base and len(c.ops) >= 3 and not (pv & (regs_of(c.ops[1]) | regs_of(c.ops[2])))
                if not same: n = max(n, 3)
            if 'op_sel' in p.mods and not p.base.startswith('v_pk') and (pv & (c.src | c.dst)): n = max(n, 1)
            if p.op.endswith('_sdwa') and (pv & (c.src | c.dst)): n = max(n, 1)
        if c.kind in ('vmem', 'ds'):
            if p.dot and (pv & c.src): n = max(n, 3)
            if p.trans and (pv & c.src): n = max(n, 1)
        if c.kind == 'vmem' and (ps & c.src): n = max(n, 5)
        if c.kind in ('salu', 'smem', 'branch') and (ps & c.src or (c.kind == 'branch' and ('s', 'vcc') in ps and 'vcc' in c.op)): n = max(n, 2)
    elif p.kind == 'mfma':
        big = p.passes == 8
        if c.kind == 'mfma':
            if p.dst & c.srcAB: n = max(n, 12 if big else 8)
            if p.dst & c.srcC and not (p.dst == c.srcC and p.passes == c.passes): n = max(n, 10 if big else 6)
            if (p.dst & c.dst) and not (p.dst & c.srcC): n = max(n, 12 if big else 8)
        elif c.kind in ('valu', 'vmem', 'ds'):
            if p.dst & (c.src | c.dst): n = max(n, 12 if big else 8)
            if c.kind == 'valu' and (p.srcC & c.dst): n = max(n, 7 if big else 3)
    elif p.kind == 'salu':
        if ('s', 'm0') in p.dst and c.kind == 'vmem' and ('s', 'm0') in c.src: n = max(n, 1)
    elif p.kind == 'vmem' and getattr(p, 'store', False) and p.wide:
        if c.kind in ('valu', 'mfma') and (p.data & c.dst): n = max(n, 2)
        elif p.data & c.dst: n = max(n, 1)
    return n

def finalize(prog, stats=None):
    out = []
    vm = []; lg = []
    def emit_wait(nv, nl):
        nonlocal vm, lg
        parts = []
        if nv is not None:
            nv = min(nv, 63)
            if nv < len(vm): parts.append('vmcnt(%d)' % nv); vm = vm[len(vm) - nv:] if nv else []
        if nl is not None:
            if any(x.kind == 'smem' for x in lg): nl = 0
            nl = min(nl, 15)
            if nl < len(lg): parts.append('lgkmcnt(%d)' % nl); lg = lg[len(lg) - nl:] if nl else []
        if parts: out.append(Ins('s_waitcnt ' + ' '.join(parts)))
    def after(q, pred):
        idx = [i for i, x in enumerate(q) if pred(x)]
        return None if not idx else len(q) - 1 - idx[-1]
    seen_tags = set()
    for it in prog.items:
        if isinstance(it, Wait):
            for t in (it.vm, it.lg):
                assert t is None or t == 'all' or t in seen_tags, 'wait on unknown tag %s' % t
            nv = None if it.vm is None else (0 if it.vm == 'all' else after(vm, lambda x: x.tag == it.vm))
            nl = None if it.lg is None else (0 if it.lg == 'all' else after(lg, lambda x: x.tag == it.lg))
            emit_wait(nv, nl); continue
        if it.kind == 'wait':
            m = re.search(r'vmcnt\((\d+)\)', it.text)
            if m: k = int(m.group(1)); vm = vm[len(vm) - k:] if 0 < k < len(vm) else ([] if k == 0 else vm)
            m = re.search(r'lgkmcnt\((\d+)\)', it.text)
            if m: k = int(m.group(1)); lg = lg[len(lg) - k:] if 0 < k < len(lg) else ([] if k == 0 else lg)
            out.append(it); continue
        if it.is_dir and it.text.startswith('.reset'):
            vm = []; lg = []; out.append(Ins('s_nop 0')); continue
        touch = it.src | it.dst
        if touch:
            emit_wait(after(vm, lambda x: x.dst & touch), after(lg, lambda x: x.dst & touch))
        need = 0; dist = 0
        for p in reversed(out):
            if p.is_label or p.is_dir: continue
            need = max(need, need_states(p, it) - dist)
            dist += p.n if p.kind == 'nop' else 1
            if dist >= 20: break
        while need > 0:
            k = min(need, 16); out.append(Ins('s_nop %d' % (k - 1))); need -= k
            if stats is not None: stats['nops'] = stats.get('nops', 0) + 1
        out.append(it)
        if it.tag: seen_tags.add(it.tag)
        if it.kind == 'vmem':
            vm.append(it)
            assert len(vm) <= 63, 'more than 63 vmem ops outstanding'
        if it.kind in ('ds', 'smem'): lg.append(it)
    return [(x.text if x.is_label or x.is_dir else '    ' + x.text) for x in out]

def kernel_text(name, lines):
    return '.globl %s\n.p2align 8\n.type %s,@function\n%s:\n' % (name, name, name) + '\n'.join(lines) + '\n'

def descriptor(name, vgprs, accum, sgprs=100):
    return '''.p2align 6
.amdhsa_kernel %s
  .amdhsa_next_free_vgpr %d
  .amdhsa_next_free_sgpr %d
  .amdhsa_accum_offset %d
  .amdhsa_group_segment_fixed_size 0
  .amdhsa_kernarg_size 120
  .amdhsa_user_sgpr_count 2
  .amdhsa_user_sgpr_kernarg_segment_ptr 1
  .amdhsa_system_sgpr_workgroup_id_x 1
.end_amdhsa_kernel
''' % (name, vgprs, sgprs, accum)

def cost(it):
    if isinstance(it, Wait): return 4
    if it.kind == 'vmem': return 10
    if it.kind == 'ds': return 8 if 'write' in it.op else 6
    if it.kind == 'valu' and it.trans: return 8
    if it.kind == 'mfma': return 8
    return 4

def schedule(main, streams, budget=8):
    BIG = 1 << 30
    S = []
    for st in streams:
        st = [(it, e, BIG if d is None else d) for it, e, d in st]
        eff = [0] * len(st); m = BIG
        for i in range(len(st) - 1, -1, -1): m = min(m, st[i][2]); eff[i] = m
        S.append([st, eff, 0])
    out = []
    for g in range(len(main) + 1):
        used = 0
        while True:
            cand = [x for x in S if x[2] < len(x[0])]
            forced = [x for x in cand if x[1][x[2]] <= g or g == len(main)]
            if forced:
                x = min(forced, key=lambda x: x[1][x[2]])
                assert x[0][x[2]][1] <= g or g == len(main), 'deadline before earliest: %s' % getattr(x[0][x[2]][0], 'text', 'wait')
            else:
                ok = [x for x in cand if x[0][x[2]][1] <= g and (used == 0 or used + cost(x[0][x[2]][0]) <= budget)]
                if not ok: break
                x = min(ok, key=lambda x: (x[1][x[2]], x[0][x[2]][1]))
            it = x[0][x[2]][0]; x[2] += 1; out.append(it); used += cost(it)
        if g < len(main): out.append(main[g])
    p = Prog(); p.items = out; return p

def spread(items, lo, hi, deadline=None):
    items = items.items if isinstance(items, Prog) else items
    n = len(items)
    return [(it, lo + (hi - lo) * i // max(n, 1), deadline) for i, it in enumerate(items)]
```

```python
from asmlib import *
Z2F = 0x0000000
Z1F = 0x0400000
HF  = 0x0800000
XNT = 0x0C00000
ST  = 0x0E00000
STATS = 0x1000000
TIMES = 0x1040000
WS_SIZE = 0x1100000
KA = dict(x=0, logA=8, Aim=16, Cre=24, Cim=32, logdt=40, Dskip=48, w_in=64, w_sp=72, b_sp=80, w_out=88, out=96, dbg=104, ws=112)
SZ = dict(x=2097152, logA=131072, Aim=131072, Cre=131072, Cim=131072, logdt=1024, Dskip=1024, w_in=1835008, w_sp=8388608,
          b_sp=4096, w_out=917504, out=2097152, dbg=256, ws=WS_SIZE)
LOG2E = 1.4426950408889634

import struct
def fhex(x): return '0x%08x' % struct.unpack('<I', struct.pack('<f', x))[0]

def load_srds(p, names, first):
    r = {}
    for i, n in enumerate(names):
        b = first + 4 * i; r[n] = b
        p('s_load_dwordx2 %s, s[0:1], %d' % (s(b, 2), KA[n]))
    for n, b in r.items():
        p('s_mov_b32 %s, %d' % (s(b + 2), SZ[n])); p('s_mov_b32 %s, 0x20000' % s(b + 3))
    return r

class Diag:
    on = False
    cyc = False
    skip = ()
ST0 = 66
class Stamper:
    def __init__(self, kidx): self.n = 0; self.kidx = kidx; self.names = []
    def __call__(self, p, name):
        if not Diag.on or name in Diag.skip: return
        assert self.n < 15
        if self.n == 0: p('s_memtime s[96:97]')
        p('%s %s' % ('s_memtime' if Diag.cyc else 's_memrealtime', s(ST0 + 2 * self.n, 2))); self.n += 1; self.names.append(name)
    def flush(self, p, srd_ws, sW, vt=250, lw=2):
        if not Diag.on: return
        p.wait(vm='all'); self(p, 'end'); p('s_memtime s[98:99]'); p.wait(lg='all'); p('s_sub_u32 s98, s98, s96')
        p('v_mov_b32 %s, 0' % v(vt))
        for i in range(self.n): p('v_writelane_b32 %s, %s, %d' % (v(vt), s(ST0 + 2 * i), i))
        p('v_writelane_b32 %s, s98, 15' % v(vt))
        p('s_lshl_b32 s7, s2, %d' % lw); p('s_add_u32 s7, s7, %s' % s(sW)); p('s_lshl_b32 s7, s7, 6'); p('s_add_u32 s7, s7, %d' % (TIMES + self.kidx * 512 * 4 * 64))
        p('v_lshlrev_b32 %s, 2, v0' % v(vt + 1)); p('s_mov_b64 exec, 0xffff')
        p('buffer_store_dword %s, %s, %s, s7 offen' % (v(vt), v(vt + 1), s(srd_ws, 4)))

def code_prefetch(p, uniq, first, last, sW, vt, st, nwaves_log2=2):
    p('s_getpc_b64 %s' % s(st, 2)); p.label(uniq)
    p('s_sub_u32 %s, %s, %s-%s' % (s(st), s(st), uniq, first)); p('s_subb_u32 %s, %s, 0' % (s(st + 1), s(st + 1)))
    p('s_lshr_b32 %s, s2, 3' % s(st + 2)); p('s_lshl_b32 %s, %s, %d' % (s(st + 2), s(st + 2), nwaves_log2)); p('s_add_u32 %s, %s, %s' % (s(st + 2), s(st + 2), s(sW)))
    p('s_and_b32 %s, %s, 7' % (s(st + 2), s(st + 2))); p('s_lshl_b32 %s, %s, 13' % (s(st + 2), s(st + 2)))
    p('v_lshlrev_b32 %s, 7, v0' % v(vt)); p('v_add_u32 %s, %s, %s' % (v(vt), s(st + 2), v(vt)))
    p('v_min_u32 %s, %s-%s-4, %s' % (v(vt), last, first, v(vt)))
    p('v_mov_b32 %s, %s' % (v(vt + 1), s(st + 1)))
    p('v_add_co_u32 %s, vcc, %s, %s' % (v(vt), s(st), v(vt))); p('v_addc_co_u32 %s, vcc, 0, %s, vcc' % (v(vt + 1), v(vt + 1)))
    p('global_load_dword %s, %s, off' % (v(vt + 2), v(vt, 2)))
```

```python
from build import *; from p8 import *
import common, json, sys
NAME = 'recurrent_scan__ssm_conv_s4d__mixer_gmlp__prompt_kernel'
OUT = 'recurrent_scan__ssm_conv_s4d__mixer_gmlp__prompt.s'
ARR = ['a%d' % i for i in range(8)] + ['a3x', 'a7x']; ISS = ['i%d' % i for i in range(8)]
TIL = ['t%d' % i for i in range(6)]
ALL = ARR + ISS + TIL + ['R', 'X', 'O', 'aW', 'ld', 'ne', 'args', 'H2', 'setup', 'x1', 'xiss', 'par', 'w01', 'xdots', 'b0', 'b2', 'z2mm', 'b4', 'b6', 'z1mm', 's1ok', 'z2st', 'km', 'kw', 'pre', 'f2', 'conv', 'pchk', 'cp', 's2ok', 'bB', 'Bmm', 'hst', 'f4b', 's4a', 'wo', 's4b', 'Cmm']
def only(*k): return tuple(x for x in ALL if x not in k)
def make8(path, diag=False, single=False, skip=(), **kw):
    common.Diag.on = bool(diag); common.Diag.cyc = diag == 'cyc'; common.Diag.skip = skip
    k = gen_p8(NAME, **kw)
    build([k], path, single=single)
    if diag: json.dump([k['stamps']], open(path.replace('.s', '.json'), 'w'))
    return k
if __name__ == '__main__':
    k = make8('p8.s'); print(len(k['lines']), 'nops', k['nops'], 'barriers', k['nbar'])
    A = only('xdots', 'w01', 'b0', 'b2', 'z2mm', 'b4', 'b6', 'z1mm', 'z2st', 'km', 'kw', 'pre', 'f2', 'conv', 'pchk', 'cp', 's2ok', 'Bmm')
    B = only('b0', 'z1mm', 's2ok', 'bB', 'Bmm', 'hst', 'f4b', 's4a', 'wo', 's4b', 'Cmm')
    make8('d8a.s', True, skip=A); make8('d8b.s', True, skip=B); make8('d8cyc.s', 'cyc', skip=A)
```
